```python
import torch

def _softmax(x, axis=-1):
    return torch.softmax(x, dim=axis)

def _gelu(x):
    return torch.nn.functional.gelu(x, approximate='tanh')

def _silu(x):
    return torch.nn.functional.silu(x)

def _sigmoid(x):
    return torch.sigmoid(x)

def _layernorm(x, axis=-1, eps=1e-05):
    m = x.mean(dim=axis, keepdim=True)
    v = x.var(dim=axis, keepdim=True, unbiased=False)
    return (x - m) / torch.sqrt(v + eps)

def _scatter_add(tgt, idx, src, axis=0):
    return tgt.clone().index_add_(axis, idx, src)

def _segment_sum(src, seg, n):
    out = torch.zeros((n,) + src.shape[1:], dtype=src.dtype)
    return out.index_add_(0, seg, src)

def _pad(x, pw):
    flat = tuple((v for pair in reversed(pw) for v in pair))
    return torch.nn.functional.pad(x, flat)
kernel_name = 'adaLN_cond__sliding_block_cached__dense_activation_silu__decode'

def setup_inputs():

    _w = lambda a: (lambda t: t.to(torch.bfloat16) if t.is_floating_point() else t)(torch.as_tensor(a))

    def _A_setup():
        B, Sq, D = (1, 1, 1024)
        Hq, Hkv, Sk, Dh = (32, 4, 65536, 128)
        assert Hq % Hkv == 0, (Hq, Hkv)
        return {'x': _w((lambda *s: torch.randn(*s, dtype=torch.bfloat16) * 0.1)(B, Sq, D)), 'k_cache': _w((lambda *s: torch.randn(*s, dtype=torch.bfloat16) * 0.8)(B, Hkv, Sk, Dh)), 'v_cache': _w((lambda *s: torch.randn(*s, dtype=torch.bfloat16) * 3.2)(B, Hkv, Sk, Dh)), 'wq': _w((lambda *s: torch.randn(*s, dtype=torch.bfloat16) * 0.8)(D, Hq * Dh) * D ** (-0.5)), 'wo': _w((lambda *s: torch.randn(*s, dtype=torch.bfloat16) * 3.2)(Hq * Dh, D) * (Hq * Dh) ** (-0.5))}
    _A_in = _A_setup()

    def _B_setup():
        B, S, D, F = (1, 1, 1024, 3584)
        return {'x': _w((lambda *s: torch.randn(*s, dtype=torch.bfloat16) * 0.1)(B, S, D)), 'w1': _w((lambda *s: torch.randn(*s, dtype=torch.bfloat16) * 3.2)(D, F) * D ** (-0.5)), 'w2': _w((lambda *s: torch.randn(*s, dtype=torch.bfloat16) * 3.2)(F, D) * F ** (-0.5))}
    _B_in = _B_setup()
    return {'A_x': _A_in['x'], 'A_k_cache': _A_in['k_cache'], 'A_v_cache': _A_in['v_cache'], 'A_wq': _A_in['wq'], 'A_wo': _A_in['wo'], 'B_x': _B_in['x'], 'B_w1': _B_in['w1'], 'B_w2': _B_in['w2'], 'c': _w((lambda *s: torch.randn(*s, dtype=torch.bfloat16) * 0.4)(1, 1024) * 8.0), 'w_mod': _w((lambda *s: torch.randn(*s, dtype=torch.bfloat16) * 0.4)(1024, 6 * 1024) * 1024 ** (-0.5) * 8.0)}

def reference(A_x, A_k_cache, A_v_cache, A_wq, A_wo, B_x, B_w1, B_w2, c, w_mod):

    def _A_ref(x, k_cache, v_cache, wq, wo):
        B, Sq, D = x.shape
        Hq, Dh = (32, 128)
        Hkv, Sk = (k_cache.shape[1], k_cache.shape[2])
        W = min(4096, max(256, Sk // 4))
        rep = Hq // Hkv
        q = (lambda x, *d: x.permute(*d))((x @ wq).reshape(B, Sq, Hq, Dh), 0, 2, 1, 3)
        k = (lambda x, n, axis: torch.repeat_interleave(x, n, dim=axis))(k_cache[:, :, Sk - W:, :], rep, axis=1)
        v = (lambda x, n, axis: torch.repeat_interleave(x, n, dim=axis))(v_cache[:, :, Sk - W:, :], rep, axis=1)
        scores = torch.einsum('bhqd,bhkd->bhqk', q, k) * Dh ** (-0.5)
        p = _softmax(scores, axis=-1)
        o = torch.einsum('bhqk,bhkd->bhqd', p, v)
        return (lambda x, *d: x.permute(*d))(o, 0, 2, 1, 3).reshape(B, Sq, Hq * Dh) @ wo

    def _B_ref(x, w1, w2):
        h = torch.einsum('bsd,df->bsf', x, w1)
        h = _silu(h)
        out = torch.einsum('bsf,fd->bsd', h, w2)
        return out
    x = A_x
    mod = (_silu(c) @ w_mod).reshape(c.shape[0], 6, 1, -1)
    sa, ca, ga, sb, cb, gb = (mod[:, 0].clone(), mod[:, 1].clone(), mod[:, 2].clone(), mod[:, 3].clone(), mod[:, 4].clone(), mod[:, 5].clone())
    h = _layernorm(x, axis=-1) * (1 + ca) + sa
    x = x + ga * _A_ref(h, A_k_cache, A_v_cache, A_wq, A_wo)
    h = _layernorm(x, axis=-1) * (1 + cb) + sb
    x = x + gb * _B_ref(h, B_w1, B_w2)
    return x
```

```python
KNAME = "adaLN_cond__sliding_block_cached__dense_activation_silu__decode_kernel"

HEADER = """; Kernarg layout (104 bytes, ptrs only, base s[0:1]):
"""

class Asm:
    def __init__(self):
        self.lines = []
        self.nlabel = 0
    def __call__(self, s=""):
        for l in s.split("\n"):
            self.lines.append(l)
    def label(self, prefix="L"):
        self.nlabel += 1
        return "%s_%d" % (prefix, self.nlabel)
    def text(self):
        return "\n".join(self.lines) + "\n"

def kernel_file(launch_lines, kernels):
    out = HEADER
    for l in launch_lines:
        out += l + "\n"
    out += '.amdgcn_target "amdgcn-amd-amdhsa--gfx950"\n.text\n'
    for (name, body, nv, ns, acc) in kernels:
        out += ".globl %s\n.p2align 8\n.type %s,@function\n%s:\n" % (name, name, name)
        out += body
        out += "s_endpgm\n"
    out += '.section .rodata,"a"\n'
    for (name, body, nv, ns, acc) in kernels:
        out += ".p2align 6\n.amdhsa_kernel %s\n" % name
        out += "  .amdhsa_next_free_vgpr %d\n  .amdhsa_next_free_sgpr %d\n  .amdhsa_accum_offset %d\n" % (nv, ns, acc)
        out += "  .amdhsa_group_segment_fixed_size 0\n  .amdhsa_kernarg_size 104\n"
        out += "  .amdhsa_user_sgpr_count 2\n  .amdhsa_user_sgpr_kernarg_segment_ptr 1\n  .amdhsa_system_sgpr_workgroup_id_x 1\n"
        out += "  .amdhsa_float_denorm_mode_32 3\n"
        out += ".end_amdhsa_kernel\n"
    return out
```

```python
import sys, argparse
from asmlib import *

XT    = 0x070000
R_M1  = 0x010000
R_Q   = 0x020000
R_O   = 0x030000
R_GB  = 0x034000
R_X1  = 0x036000
R_CS  = 0x038000
R_OP  = 0x040000
R_FP  = 0x050000
R_U   = 0x060000
R_M2  = 0x080000
R_AP  = 0x100000
TS_OFF = 0x8000000
L_CNT = 0x0
L_RED = 0x100
L_ML  = 0x900
L_SCR = 0xA00
L_Q   = 0x1000
L_X1  = 0x1800
L_AO  = 0x2000
LDS_BYTES = 0x8000
SPIN = 40000
LOG2E = 0x3fb8aa3b
NLOG2E = 0xbfb8aa3b

class Gen:
    def __init__(s, ts=False, local=True, sleep=0):
        s.a = Asm(); s.ts_on = ts; s.local = local; s.sleep = sleep
    def __call__(s, x): s.a(x)
    def ts(s, k):
        if s.ts_on: s("s_memrealtime s[%d:%d]" % (70 + 2*k, 71 + 2*k))
    def end(s):
        s("s_branch L_exit")
    def srd(s, d, p, size):
        s("s_mov_b32 s%d, s%d" % (d, p)); s("s_mov_b32 s%d, s%d" % (d+1, p+1))
        s("s_mov_b32 s%d, 0x%x" % (d+2, size)); s("s_mov_b32 s%d, 0x20000" % (d+3))
    def load_block(s, vd, srd, voff, sbase, stride, extra=0):
        for j in range(8):
            off = extra + j * stride
            if off == 0:
                so = sbase
            else:
                s("s_add_u32 s50, s%d, 0x%x" % (sbase, off)); so = 50
            s("buffer_load_dwordx4 v[%d:%d], v%d, s[%d:%d], s%d offen nt" % (vd+4*j, vd+4*j+3, voff, srd, srd+3, so))
    def perm_block(s, vs, vd):
        for d in range(8):
            for jj in range(4):
                s("v_perm_b32 v%d, v%d, v%d, s%d" % (vd+4*d+jj, vs+4*(2*jj+1)+(d>>1), vs+4*(2*jj)+(d>>1), 67 + (d&1)))
    def mfma_block(s, acc, vx, vw, first):
        for d in range(8):
            c = "0" if first else "v[%d:%d]" % (acc+4*d, acc+4*d+3)
            s("v_mfma_f32_16x16x32_bf16 v[%d:%d], v[%d:%d], v[%d:%d], %s" % (acc+4*d, acc+4*d+3, vx, vx+3, vw+4*d, vw+4*d+3, c))
    def epilogue(s, acc, vo):
        s("s_nop 3")
        for d in range(8):
            q, hh = d >> 1, d & 1
            s("v_add_f32_dpp v%d, v%d, v%d row_ror:8 row_mask:0x%x bank_mask:0x%x" % (vo, acc+4*d+(1-hh), acc+4*d+hh, 1 << q, 0xc if hh else 0x3))
    def silu1(s, v, t):
        s("v_mul_f32 v%d, 0x%x, v%d" % (t, NLOG2E, v))
        s("v_exp_f32 v%d, v%d" % (t, t))
        s("s_nop 0")
        s("v_add_f32 v%d, 1.0, v%d" % (t, t))
        s("v_rcp_f32 v%d, v%d" % (t, t))
        s("s_nop 0")
        s("v_mul_f32 v%d, v%d, v%d" % (v, v, t))
    def silu8(s, v, t):
        for i in range(4):
            s("v_lshlrev_b32 v%d, 16, v%d" % (t+2*i, v+i))
            s("v_and_b32 v%d, 0xffff0000, v%d" % (t+2*i+1, v+i))
        for i in range(8): s("v_mul_f32 v%d, 0x%x, v%d" % (t+8+i, NLOG2E, t+i))
        for i in range(8): s("v_exp_f32 v%d, v%d" % (t+8+i, t+8+i))
        for i in range(8): s("v_add_f32 v%d, 1.0, v%d" % (t+8+i, t+8+i))
        for i in range(8): s("v_rcp_f32 v%d, v%d" % (t+8+i, t+8+i))
        for i in range(8): s("v_mul_f32 v%d, v%d, v%d" % (t+i, t+i, t+8+i))
        for i in range(4): s("v_cvt_pk_bf16_f32 v%d, v%d, v%d" % (v+i, t+2*i, t+2*i+1))
    def bf16r(s, v):
        s("v_cvt_pk_bf16_f32 v%d, v%d, v%d" % (v, v, v))
        s("v_and_b32 v%d, 0xffff0000, v%d" % (v, v))
    def poll(s, loads, tags, t, sleep=None):
        lp = s.a.label("poll"); ld = s.a.label("pdone")
        s("s_mov_b32 s64, 0")
        s("%s:" % lp)
        for l in loads: s(l)
        s("s_waitcnt vmcnt(0)")
        if len(tags) == 1:
            s("v_cmp_ne_u32 vcc, s31, v%d" % tags[0])
        else:
            s("v_xor_b32 v%d, s31, v%d" % (t, tags[0]))
            rest = tags[1:]
            while rest:
                if len(rest) >= 2:
                    s("v_xor_b32 v%d, s31, v%d" % (t+1, rest[0]))
                    s("v_xor_b32 v%d, s31, v%d" % (t+2, rest[1]))
                    s("v_or3_b32 v%d, v%d, v%d, v%d" % (t, t, t+1, t+2))
                    rest = rest[2:]
                else:
                    s("v_xor_b32 v%d, s31, v%d" % (t+1, rest[0]))
                    s("v_or_b32 v%d, v%d, v%d" % (t, t, t+1))
                    rest = rest[1:]
            s("v_cmp_ne_u32 vcc, 0, v%d" % t)
        s("s_cbranch_vccz %s" % ld)
        sl = s.sleep if sleep is None else sleep
        if sl: s("s_sleep %d" % sl)
        s("s_add_u32 s64, s64, 1")
        s("s_cmp_lt_u32 s64, %d" % SPIN)
        s("s_cbranch_scc1 %s" % lp)
        s("%s:" % ld)
    def ld2(s, vd, voff, soff, imm):
        return "buffer_load_dwordx2 v[%d:%d], v%d, s[40:43], s%d offen offset:%d sc1" % (vd, vd+1, voff, soff, imm)
    def ld4(s, vd, voff, soff, imm):
        return "buffer_load_dwordx4 v[%d:%d], v%d, s[40:43], s%d offen offset:%d sc1" % (vd, vd+3, voff, soff, imm)
    def store_lg(s, instr):
        if not s.local:
            s(instr + " sc1"); return
        l1 = s.a.label("stg"); l2 = s.a.label("std")
        s("s_cmp_eq_u32 s65, 0")
        s("s_cbranch_scc1 %s" % l1)
        s(instr)
        s("s_branch %s" % l2)
        s("%s:" % l1)
        s(instr + " sc1")
        s("%s:" % l2)
    def xt_check(s, t):
        s("v_and_b32 v%d, 31, v1" % t)
        s("v_lshlrev_b32 v%d, 7, v%d" % (t, t))
        s("s_lshl_b32 s51, s48, 12"); s("s_add_u32 s51, s51, 0x%x" % XT)
        s(s.ld2(t+2, t, 51, 0))
        s("s_waitcnt vmcnt(0)")
        s("v_xor_b32 v%d, s66, v%d" % (t+2, t+2))
        s("v_xor_b32 v%d, s31, v%d" % (t+3, t+3))
        s("v_or_b32 v%d, v%d, v%d" % (t+2, t+2, t+3))
        s("v_cmp_ne_u32 vcc, 0, v%d" % (t+2))
        s("s_cmp_eq_u64 vcc, 0")
        s("s_cselect_b32 s65, 1, 0")
    def xt_publish(s, t):
        s("s_lshl_b32 s51, s48, 5"); s("s_add_u32 s51, s51, s49"); s("s_lshl_b32 s51, s51, 7"); s("s_add_u32 s51, s51, 0x%x" % XT)
        s("v_mov_b32 v%d, s66" % t); s("v_mov_b32 v%d, s31" % (t+1))
        s("s_mov_b64 exec, 0xffff")
        s("buffer_store_dwordx2 v[%d:%d], v10, s[40:43], s51 offen sc1" % (t, t+1))
        s("s_mov_b64 exec, -1")
    def get_tag(s):
        s("s_waitcnt lgkmcnt(0)")
        s("s_mul_i32 s31, s30, 0x19660d")
        s("s_add_u32 s31, s31, 0x3c6ef35f")
    def ln_stats(s, vp, t, vM, vRD):
        for i in range(8):
            s("v_lshlrev_b32 v%d, 16, v%d" % (t+2*i, vp+i))
            s("v_and_b32 v%d, 0xffff0000, v%d" % (t+2*i+1, vp+i))
        s("v_readfirstlane_b32 s52, v%d" % t)
        s("s_nop 1")
        for i in range(16): s("v_subrev_f32 v%d, s52, v%d" % (t+i, t+i))
        a1, a2, a3 = t+16, t+17, t+18
        s("v_add_f32 v%d, v%d, v%d" % (a1, t, t+1))
        s("v_mul_f32 v%d, v%d, v%d" % (a2, t, t))
        s("v_fmac_f32 v%d, v%d, v%d" % (a2, t+1, t+1))
        for i in range(2, 16):
            s("v_add_f32 v%d, v%d, v%d" % (a1, a1, t+i))
            s("v_fmac_f32 v%d, v%d, v%d" % (a2, t+i, t+i))
        s("s_nop 1")
        s("v_permlane16_swap_b32 v%d, v%d" % (a1, a2))
        s("s_nop 0")
        s("v_add_f32 v%d, v%d, v%d" % (a1, a1, a2))
        for m in ("quad_perm:[1,0,3,2]", "quad_perm:[2,3,0,1]", "row_half_mirror", "row_mirror"):
            s("s_nop 1")
            s("v_add_f32_dpp v%d, v%d, v%d %s row_mask:0xf bank_mask:0xf" % (a1, a1, a1, m))
        s("s_nop 0")
        s("v_readlane_b32 s53, v%d, 0" % a1)
        s("v_readlane_b32 s54, v%d, 16" % a1)
        s("v_readlane_b32 s55, v%d, 32" % a1)
        s("v_readlane_b32 s56, v%d, 48" % a1)
        s("s_nop 0")
        s("v_mov_b32 v%d, s53" % a1)
        s("v_mov_b32 v%d, s54" % a2)
        s("v_add_f32 v%d, s55, v%d" % (a1, a1))
        s("v_add_f32 v%d, s56, v%d" % (a2, a2))
        s("v_mul_f32 v%d, 0x3a800000, v%d" % (a1, a1))
        s("v_mul_f32 v%d, 0x3a800000, v%d" % (a2, a2))
        s("v_add_f32 v%d, s52, v%d" % (vM, a1))
        s("v_fma_f32 v%d, -v%d, v%d, v%d" % (a2, a1, a1, a2))
        s("v_max_f32 v%d, 0, v%d" % (a2, a2))
        s.bf16r(vM)
        s.bf16r(a2)
        s("v_add_f32 v%d, 0x3727c5ac, v%d" % (a2, a2))
        s.bf16r(a2)
        s("v_sqrt_f32 v%d, v%d" % (a2, a2))
        s("s_nop 0")
        s.bf16r(a2)
        s("v_rcp_f32 v%d, v%d" % (vRD, a2))
        s("s_nop 0")
    def ln_apply(s, v, vM, vRD):
        s("v_sub_f32 v%d, v%d, v%d" % (v, v, vM)); s.bf16r(v)
        s("v_mul_f32 v%d, v%d, v%d" % (v, v, vRD)); s.bf16r(v)
    def to_operand(s, v, vx):
        s("v_cvt_pk_bf16_f32 v%d, v%d, v%d" % (v, v, v))
        s("ds_write_b16 v6, v%d" % v)
        s("s_waitcnt lgkmcnt(0)")
        s("ds_read_b128 v[%d:%d], v7" % (vx, vx+3))
        s("s_waitcnt lgkmcnt(0)")
    def reduce8_publish(s, vo, soff, lg=False, tsk=None):
        ln = s.a.label("nopub")
        s("ds_write_b32 v8, v%d" % vo)
        s("s_waitcnt lgkmcnt(0)")
        s("s_barrier")
        s("s_cmp_lg_u32 s3, 0")
        s("s_cbranch_scc1 %s" % ln)
        for i in range(4):
            s("ds_read2st64_b32 v[%d:%d], v9 offset0:%d offset1:%d" % (48+2*i, 49+2*i, 1+2*i, 2+2*i))
        s("s_waitcnt lgkmcnt(0)")
        s("v_add_f32 v48, v48, v49"); s("v_add_f32 v50, v50, v51"); s("v_add_f32 v52, v52, v53"); s("v_add_f32 v54, v54, v55")
        s("v_add_f32 v48, v48, v50"); s("v_add_f32 v52, v52, v54")
        s("v_mov_b32 v49, s31")
        s("v_add_f32 v48, v48, v52")
        st = "buffer_store_dwordx2 v[48:49], v10, s[40:43], s%d offen" % soff
        if lg: s.store_lg(st)
        else: s(st + " sc1")
        if tsk is not None: s.ts(tsk)
        s("%s:" % ln)

    def build(s):
        s("s_cmp_ge_u32 s2, 256")
        s("s_cbranch_scc1 L_end")
        s("s_load_dwordx16 s[4:19], s[0:1], 0")
        s("s_load_dwordx8 s[20:27], s[0:1], 64")
        s("s_load_dwordx2 s[28:29], s[0:1], 96")
        if s.ts_on:
            for k in range(1, 16): s("s_mov_b64 s[%d:%d], 0" % (70+2*k, 71+2*k))
            s.ts(0)
        s("v_lshrrev_b32 v2, 6, v0")
        s("v_and_b32 v1, 63, v0")
        s("v_readfirstlane_b32 s3, v2")
        s("s_and_b32 s48, s2, 7")
        s("s_lshr_b32 s49, s2, 3")
        s("s_getreg_b32 s66, hwreg(HW_REG_XCC_ID, 0, 4)")
        s("s_mov_b32 s67, 0x05040100")
        s("s_mov_b32 s68, 0x07060302")
        s("s_mov_b32 s65, 0")
        s("v_and_b32 v2, 7, v1")
        s("v_lshrrev_b32 v3, 3, v1")
        s("v_lshrrev_b32 v4, 4, v1")
        s("v_lshlrev_b32 v4, 1, v4")
        s("v_and_b32 v11, 1, v1")
        s("v_add_u32 v4, v4, v11")
        s("v_lshlrev_b32 v4, 4, v4")
        s("v_lshl_add_u32 v5, v2, 3, v3")
        s("s_lshl_b32 s50, s3, 7"); s("s_add_u32 s50, s50, 0x%x" % L_SCR)
        s("v_lshl_add_u32 v6, v1, 1, s50")
        s("v_add_u32 v7, s50, v4")
        s("s_lshl_b32 s50, s3, 8"); s("s_add_u32 s50, s50, 0x%x" % L_RED)
        s("v_lshl_add_u32 v8, v5, 2, s50")
        s("v_lshlrev_b32 v9, 2, v1")
        s("v_lshlrev_b32 v10, 3, v1")
        s("v_lshlrev_b32 v2, 4, v2")
        s("s_cmp_ge_u32 s48, 4")
        s("s_cbranch_scc1 L_lclass")
        s.e_class()
        s("L_lclass:")
        s.l_class()
        s("L_exit:")
        if s.ts_on:
            s("s_waitcnt lgkmcnt(0)")
            s("s_lshl_b32 s50, s2, 3"); s("s_add_u32 s50, s50, s3"); s("s_lshl_b32 s50, s50, 7"); s("s_add_u32 s50, s50, 0x%x" % TS_OFF)
            s("s_mov_b64 exec, 1")
            s("v_mov_b32 v12, 0")
            for k in range(8):
                for i in range(4): s("v_mov_b32 v%d, s%d" % (16+4*k+i, 70+4*k+i))
                s("buffer_store_dwordx4 v[%d:%d], v12, s[40:43], s50 offen offset:%d" % (16+4*k, 19+4*k, 16*k))
        s("L_end:")

    def voff_w(s, vd, stride):
        s("s_mov_b32 s50, %d" % (8*stride))
        s("v_mul_lo_u32 v%d, v3, s50" % vd)
        s("v_add_u32 v%d, v%d, v2" % (vd, vd))

    def e_class(s):
        s("v_mov_b32 v12, 0")
        s("ds_write_b32 v12, v12")
        s("s_cmp_ge_u32 s3, 4")
        s("s_cbranch_scc1 L_e_att")
        s.voff_w(12, 12288)
        s("s_lshl_b32 s57, s48, 2"); s("s_add_u32 s57, s57, s3"); s("s_lshl_b32 s57, s57, 6")
        s("s_mul_i32 s58, s57, 12288"); s("s_lshl_b32 s50, s49, 7"); s("s_add_u32 s58, s58, s50")
        s("s_lshl_b32 s57, s57, 1")
        s("s_lshl_b32 s59, s48, 1"); s("s_lshr_b32 s50, s49, 4"); s("s_add_u32 s59, s59, s50")
        s("s_lshl_b32 s60, s59, 8")
        s("s_waitcnt lgkmcnt(0)")
        s.srd(32, 22, 12582912); s.srd(44, 20, 2048)
        s("buffer_load_dwordx4 v[16:19], v4, s[44:47], s57 offen")
        s("buffer_load_dwordx4 v[20:23], v4, s[44:47], s60 offen")
        s("buffer_load_dwordx4 v[24:27], v4, s[44:47], s60 offen offset:128")
        s.load_block(64, 32, 12, 58, 12288)
        s("s_load_dword s30, s[28:29], 0")
        s.srd(40, 28, 0x10000000)
        s("s_barrier")
        s("s_waitcnt vmcnt(8)")
        s.silu8(16, 160); s.silu8(20, 160); s.silu8(24, 160)
        s.get_tag()
        s("s_waitcnt vmcnt(0)")
        s.ts(10)
        s.perm_block(64, 128)
        s("s_nop 1")
        s.mfma_block(32, 16, 128, True)
        s.epilogue(32, 28)
        s("ds_write_b32 v8, v28")
        s("v_mov_b32 v29, 0"); s("v_mov_b32 v30, 1")
        s("s_waitcnt lgkmcnt(0)")
        s("s_mov_b64 exec, 1")
        s("ds_add_rtn_u32 v31, v29, v30")
        s("s_mov_b64 exec, -1")
        s("s_waitcnt lgkmcnt(0)")
        s("v_readfirstlane_b32 s50, v31")
        s("s_cmp_lg_u32 s50, 3")
        lm = s.a.label("m1done")
        s("s_cbranch_scc1 %s" % lm)
        s("ds_read2st64_b32 v[48:49], v9 offset0:1 offset1:2")
        s("ds_read2st64_b32 v[50:51], v9 offset0:3 offset1:4")
        s("s_lshl_b32 s51, s49, 2"); s("s_add_u32 s51, s51, s48"); s("s_lshl_b32 s51, s51, 9"); s("s_add_u32 s51, s51, 0x%x" % R_M1)
        s("s_waitcnt lgkmcnt(0)")
        s("v_add_f32 v48, v48, v49"); s("v_add_f32 v50, v50, v51")
        s("v_mov_b32 v49, s31")
        s("v_add_f32 v48, v48, v50")
        s("buffer_store_dwordx2 v[48:49], v10, s[40:43], s51 offen sc1")
        s.ts(1)
        s("%s:" % lm)
        lq = s.a.label("m2done"); lx = s.a.label("noxt")
        s("s_cmp_lg_u32 s3, 3"); s("s_cbranch_scc1 %s" % lx)
        s.xt_publish(28)
        s("s_branch %s" % lq)
        s("%s:" % lx)
        s("s_mul_i32 s58, s59, %d" % (128*12288))
        s("s_and_b32 s57, s49, 15")
        s("s_lshl_b32 s50, s57, 7"); s("s_add_u32 s58, s58, s50")
        s("s_lshl_b32 s50, s3, 11"); s("s_add_u32 s58, s58, s50"); s("s_add_u32 s58, s58, 4096")
        s.load_block(64, 32, 12, 58, 12288)
        s.load_block(96, 32, 12, 58, 12288, extra=64*12288)
        s("s_lshl_b32 s51, s3, 4"); s("s_add_u32 s51, s51, s57"); s("s_lshl_b32 s51, s51, 3"); s("s_add_u32 s51, s51, s59")
        s("s_lshl_b32 s51, s51, 9"); s("s_add_u32 s51, s51, 0x%x" % R_M2)
        s("v_lshlrev_b32 v13, 3, v5")
        s("s_waitcnt vmcnt(8)")
        s.perm_block(64, 128)
        s("s_nop 1")
        s.mfma_block(32, 20, 128, True)
        s("s_waitcnt vmcnt(0)")
        s.perm_block(96, 160)
        s("s_nop 1")
        s.mfma_block(32, 24, 160, False)
        s.epilogue(32, 28)
        s("v_mov_b32 v29, s31")
        s("buffer_store_dwordx2 v[28:29], v13, s[40:43], s51 offen sc1")
        s.ts(3)
        s("%s:" % lq)
        s.q_poll()
        if s.local: s.xt_check(28)
        s("v_and_b32 v12, 7, v1")
        s("v_mul_u32_u24 v12, 528, v12")
        s("v_bfe_u32 v13, v1, 3, 2")
        s("v_lshrrev_b32 v14, 5, v1")
        s("s_lshl_b32 s50, s3, 1")
        s("v_add_u32 v14, s50, v14")
        s("v_lshl_add_u32 v13, v13, 3, v14")
        s("v_lshl_add_u32 v12, v13, 4, v12")
        s("v_lshlrev_b32 v14, 5, v14")
        s("v_lshlrev_b32 v13, 12, v3")
        s("v_add_u32 v13, v13, v2")
        s("s_lshl_b32 s51, s48, 17"); s("s_lshl_b32 s50, s3, 15"); s("s_add_u32 s51, s51, s50")
        s("s_lshl_b32 s50, s49, 7"); s("s_add_u32 s51, s51, s50"); s("s_add_u32 s51, s51, 0x%x" % R_AP)
        s("v_mov_b32 v91, s31")
        s("s_barrier")
        s("ds_read_b128 v[80:83], v14 offset:%d" % L_ML)
        s("ds_read_b128 v[84:87], v14 offset:%d" % (L_ML+16))
        for a in range(4):
            s("ds_read_b128 v[%d:%d], v12 offset:%d" % (64+4*a, 67+4*a, L_AO + 4224*a))
        s("s_waitcnt lgkmcnt(4)")
        s("v_max3_f32 v92, v80, v82, v84")
        s("v_max_f32 v92, v92, v86")
        for a in range(4): s("v_sub_f32 v%d, v%d, v92" % (80+2*a, 80+2*a))
        for a in range(4): s("v_exp_f32 v%d, v%d" % (80+2*a, 80+2*a))
        s("s_nop 0")
        s("v_mul_f32 v93, v80, v81")
        for a in range(1, 4): s("v_fmac_f32 v93, v%d, v%d" % (80+2*a, 81+2*a))
        s("v_rcp_f32 v94, v93")
        s("v_log_f32 v95, v93")
        s("s_waitcnt lgkmcnt(0)")
        for t in range(4): s("v_mul_f32 v%d, v80, v%d" % (96+t, 64+t))
        for a in range(1, 4):
            for t in range(4): s("v_fmac_f32 v%d, v%d, v%d" % (96+t, 80+2*a, 64+4*a+t))
        s("v_add_f32 v88, v92, v95")
        for t in range(4): s("v_mul_f32 v%d, v94, v%d" % (96+t, 96+t))
        s("v_cvt_pk_bf16_f32 v89, v96, v97")
        s("v_cvt_pk_bf16_f32 v90, v98, v99")
        s.store_lg("buffer_store_dwordx4 v[88:91], v13, s[40:43], s51 offen")
        s.ts(5)
        s("s_branch L_e_tail")
        s("L_e_att:")
        s("v_and_b32 v11, 15, v1")
        s("v_lshrrev_b32 v14, 4, v1")
        s("v_lshrrev_b32 v12, 1, v11"); s("v_lshlrev_b32 v12, 8, v12")
        s("v_and_b32 v13, 1, v1"); s("v_lshl_add_u32 v12, v13, 6, v12")
        s("v_lshl_add_u32 v12, v14, 4, v12")
        s("v_lshlrev_b32 v13, 9, v14"); s("v_lshl_add_u32 v13, v11, 4, v13")
        s("s_lshl_b32 s57, s48, 24"); s("s_add_u32 s57, s57, 0xF00000")
        s("s_lshl_b32 s50, s49, 15"); s("s_add_u32 s57, s57, s50")
        s("s_sub_u32 s59, s3, 4")
        s("s_lshl_b32 s50, s59, 13"); s("s_add_u32 s57, s57, s50")
        s("s_add_u32 s58, s57, 4096")
        s("s_waitcnt lgkmcnt(0)")
        s.srd(32, 6, 67108864); s.srd(36, 8, 67108864)
        s("s_load_dword s30, s[28:29], 0")
        s.srd(40, 28, 0x10000000)
        s("s_barrier")
        for b in range(4):
            for sp in range(2):
                v = 64 + (2*b+sp)*4
                s("buffer_load_dwordx4 v[%d:%d], v12, s[32:35], s%d offen offset:%d nt" % (v, v+3, 57 + (b>>1), (b&1)*2048 + sp*128))
        for e in range(2):
            for b in range(4):
                v = 96 + (4*e+b)*4
                s("buffer_load_dwordx4 v[%d:%d], v13, s[36:39], s%d offen offset:%d nt" % (v, v+3, 57 + (b>>1), (b&1)*2048 + e*256))
        s("v_and_b32 v12, 7, v1")
        s("v_bfe_u32 v13, v1, 3, 1")
        s("v_lshlrev_b32 v15, 8, v12"); s("v_lshl_add_u32 v15, v13, 6, v15"); s("v_lshl_add_u32 v15, v14, 4, v15")
        s("v_lshl_add_u32 v13, v14, 3, v12"); s("v_lshlrev_b32 v13, 4, v13")
        s("s_mul_i32 s50, s59, 4224")
        s("v_add_u32 v13, s50, v13")
        s("v_lshlrev_b32 v12, 5, v12"); s("s_lshl_b32 s50, s59, 3"); s("v_add_u32 v12, s50, v12")
        for i in range(4): s("v_mov_b32 v%d, 0x3f803f80" % (24+i))
        s("v_lshlrev_b32 v11, 4, v1")
        s("s_lshl_b32 s60, s48, 17"); s("s_lshl_b32 s50, s49, 12"); s("s_add_u32 s60, s60, s50"); s("s_add_u32 s60, s60, 0x%x" % R_AP)
        s.get_tag()
        s("s_waitcnt vmcnt(0)")
        s.ts(2)
        s.perm_block(96, 128)
        lw = s.a.label("nowarm")
        s("s_cmp_lg_u32 s3, 4"); s("s_cbranch_scc1 %s" % lw)
        for i in range(4): s(s.ld4(96+4*i, 11, 60, 1024*i))
        s("%s:" % lw)
        s.q_poll()
        s.ts(4)
        s("ds_read_b128 v[16:19], v15 offset:%d" % L_Q)
        s("ds_read_b128 v[20:23], v15 offset:%d" % (L_Q+128))
        s("s_waitcnt lgkmcnt(1)")
        for b in range(4):
            s("v_mfma_f32_16x16x32_bf16 v[%d:%d], v[%d:%d], v[16:19], 0" % (32+4*b, 35+4*b, 64+8*b, 67+8*b))
        s("s_waitcnt lgkmcnt(0)")
        for b in range(4):
            s("v_mfma_f32_16x16x32_bf16 v[%d:%d], v[%d:%d], v[20:23], v[%d:%d]" % (32+4*b, 35+4*b, 68+8*b, 71+8*b, 32+4*b, 35+4*b))
        s("s_nop 4")
        for b in range(4):
            s("v_add_f32_dpp v%d, v%d, v%d row_ror:8 row_mask:0xf bank_mask:0x3" % (48+b, 32+4*b+1, 32+4*b))
            s("v_add_f32_dpp v%d, v%d, v%d row_ror:8 row_mask:0xf bank_mask:0xc" % (48+b, 32+4*b+2, 32+4*b+3))
        s("v_cvt_pk_bf16_f32 v52, v48, v49"); s("v_cvt_pk_bf16_f32 v53, v50, v51")
        s("v_lshlrev_b32 v48, 16, v52"); s("v_and_b32 v49, 0xffff0000, v52")
        s("v_lshlrev_b32 v50, 16, v53"); s("v_and_b32 v51, 0xffff0000, v53")
        for b in range(4): s("v_mul_f32 v%d, 0x3db504f3, v%d" % (48+b, 48+b))
        s("v_cvt_pk_bf16_f32 v52, v48, v49"); s("v_cvt_pk_bf16_f32 v53, v50, v51")
        s("v_lshlrev_b32 v48, 16, v52"); s("v_and_b32 v49, 0xffff0000, v52")
        s("v_lshlrev_b32 v50, 16, v53"); s("v_and_b32 v51, 0xffff0000, v53")
        s("v_max3_f32 v54, v48, v49, v50"); s("v_max_f32 v54, v54, v51")
        s("s_nop 1")
        s("v_max_f32_dpp v54, v54, v54 row_ror:8 row_mask:0xf bank_mask:0xf")
        s("v_mov_b32 v55, v54")
        s("s_nop 1")
        s("v_permlane16_swap_b32 v54, v55")
        s("s_nop 0")
        s("v_max_f32 v54, v54, v55")
        s("v_mov_b32 v55, v54")
        s("s_nop 1")
        s("v_permlane32_swap_b32 v54, v55")
        s("s_nop 0")
        s("v_max_f32 v54, v54, v55")
        s("s_mov_b32 s50, 0x%x" % LOG2E)
        for b in range(4): s("v_sub_f32 v%d, v%d, v54" % (48+b, 48+b))
        for b in range(4): s("v_mul_f32 v%d, s50, v%d" % (48+b, 48+b))
        for b in range(4): s("v_exp_f32 v%d, v%d" % (48+b, 48+b))
        s("v_mul_f32 v56, s50, v54")
        s("v_cvt_pk_bf16_f32 v28, v48, v49"); s("v_cvt_pk_bf16_f32 v29, v50, v51")
        s("s_nop 1")
        s("v_mov_b32_dpp v30, v28 row_ror:8 row_mask:0xf bank_mask:0xf")
        s("v_mov_b32_dpp v31, v29 row_ror:8 row_mask:0xf bank_mask:0xf")
        s("s_nop 1")
        s("v_mfma_f32_16x16x32_bf16 v[60:63], v[24:27], v[28:31], 0")
        for d in range(8):
            s("v_mfma_f32_16x16x32_bf16 v[%d:%d], v[%d:%d], v[28:31], 0" % (160+4*d, 163+4*d, 128+4*d, 131+4*d))
        s("s_mov_b32 s62, 0x00ff00ff"); s("s_mov_b32 s63, 0x00ff00ff")
        s("s_mov_b64 exec, s[62:63]")
        s("v_mov_b32 v57, v60")
        s("ds_write_b64 v12, v[56:57] offset:%d" % L_ML)
        for d in range(8):
            s("ds_write_b128 v13, v[%d:%d] offset:%d" % (160+4*d, 163+4*d, L_AO + 528*d))
        s("s_mov_b64 exec, -1")
        s("s_waitcnt lgkmcnt(0)")
        s("s_barrier")
        s("s_cmp_lg_u32 s3, 4"); s("s_cbranch_scc1 L_e_tail")
        s("v_lshrrev_b32 v12, 4, v1"); s("v_lshlrev_b32 v12, 5, v12")
        s("v_and_b32 v13, 7, v1"); s("v_lshl_add_u32 v12, v13, 2, v12")
        s("s_lshl_b32 s51, s48, 5"); s("s_add_u32 s51, s51, s49"); s("s_lshl_b32 s51, s51, 7"); s("s_add_u32 s51, s51, 0x%x" % R_O)
        s("s_mov_b32 s62, 0x00550055"); s("s_mov_b32 s63, 0x00550055")
        s.poll([s.ld4(64+4*i, 11, 60, 1024*i) for i in range(4)], [67, 71, 75, 79], 28)
        s("v_max3_f32 v32, v64, v68, v72"); s("v_max_f32 v32, v32, v76")
        for i in range(4):
            s("v_lshlrev_b32 v%d, 16, v%d" % (80+4*i, 65+4*i)); s("v_and_b32 v%d, 0xffff0000, v%d" % (81+4*i, 65+4*i))
        s("v_max_f32_dpp v32, v32, v32 row_ror:8 row_mask:0xf bank_mask:0xf")
        s("v_mov_b32 v33, v32")
        for i in range(2):
            s("v_lshlrev_b32 v%d, 16, v%d" % (82+4*i, 66+4*i)); s("v_and_b32 v%d, 0xffff0000, v%d" % (83+4*i, 66+4*i))
        s("v_permlane16_swap_b32 v32, v33")
        s("s_nop 0")
        s("v_max_f32 v32, v32, v33")
        s("v_mov_b32 v33, v32")
        for i in range(2, 4):
            s("v_lshlrev_b32 v%d, 16, v%d" % (82+4*i, 66+4*i)); s("v_and_b32 v%d, 0xffff0000, v%d" % (83+4*i, 66+4*i))
        s("v_permlane32_swap_b32 v32, v33")
        s("s_nop 0")
        s("v_max_f32 v32, v32, v33")
        for i in range(4): s("v_sub_f32 v%d, v%d, v32" % (36+i, 64+4*i))
        for i in range(4): s("v_exp_f32 v%d, v%d" % (36+i, 36+i))
        s("s_nop 0")
        s("v_add_f32 v34, v36, v37"); s("v_add_f32 v35, v38, v39")
        for t in range(4): s("v_mul_f32 v%d, v36, v%d" % (40+t, 80+t))
        s("v_add_f32 v34, v34, v35")
        for i in range(1, 4):
            for t in range(4): s("v_fmac_f32 v%d, v%d, v%d" % (40+t, 36+i, 80+4*i+t))
        s("v_add_f32_dpp v34, v34, v34 row_ror:8 row_mask:0xf bank_mask:0xf")
        s("s_nop 0")
        s("v_mov_b32 v35, v34")
        s("v_permlane16_swap_b32 v40, v41")
        s("v_permlane16_swap_b32 v42, v43")
        s("v_permlane16_swap_b32 v34, v35")
        s("v_add_f32 v40, v40, v41"); s("v_add_f32 v42, v42, v43"); s("v_add_f32 v34, v34, v35")
        s("v_mov_b32 v35, v34")
        s("s_nop 0")
        s("v_permlane32_swap_b32 v40, v42")
        s("v_permlane32_swap_b32 v34, v35")
        s("v_add_f32 v40, v40, v42"); s("v_add_f32 v34, v34, v35")
        s("v_rcp_f32 v34, v34")
        s("s_nop 0")
        s("v_add_f32_dpp v40, v40, v40 row_ror:8 row_mask:0xf bank_mask:0xf")
        s("v_mov_b32 v43, s31")
        s("v_mul_f32 v40, v40, v34")
        s("s_nop 1")
        s("v_mov_b32_dpp v41, v40 quad_perm:[1,0,3,2] row_mask:0xf bank_mask:0xf")
        s("v_cvt_pk_bf16_f32 v42, v40, v41")
        s("s_mov_b64 exec, s[62:63]")
        s("buffer_store_dwordx2 v[42:43], v12, s[40:43], s51 offen sc1")
        s("s_mov_b64 exec, -1")
        s.ts(6)
        s("L_e_tail:")
        s("s_barrier")
        s("s_cmp_ge_u32 s49, 28")
        s("s_cbranch_scc1 L_e_gb")
        s.voff_w(12, 7168)
        s("s_mul_i32 s57, s48, 28"); s("s_add_u32 s57, s57, s49")
        s("s_and_b32 s59, s57, 1"); s("s_lshl_b32 s59, s59, 3"); s("s_add_u32 s59, s59, s3")
        s("s_mul_i32 s58, s59, %d" % (64*7168))
        s("s_lshr_b32 s50, s57, 1"); s("s_lshl_b32 s50, s50, 7"); s("s_add_u32 s58, s58, s50")
        s.srd(32, 16, 7340032)
        s.load_block(64, 32, 12, 58, 7168)
        s("s_lshl_b32 s61, s57, 9"); s("s_add_u32 s61, s61, 0x%x" % R_U)
        s("s_lshl_b32 s51, s59, 9"); s("s_add_u32 s51, s51, 0x%x" % R_CS)
        s("s_lshl_b32 s60, s3, 9"); s("s_add_u32 s60, s60, 0x%x" % R_X1)
        s("s_lshl_b32 s50, s3, 8"); s("v_add_u32 v13, s50, v9")
        s("v_lshlrev_b32 v14, 5, v1")
        s("s_lshl_b32 s50, s59, 7"); s("v_lshl_add_u32 v15, v1, 1, s50")
        s("s_waitcnt vmcnt(0)")
        s.ts(7)
        s.perm_block(64, 128)
        s.poll([s.ld2(20, 10, 51, 0)], [21], 28)
        s("v_lshlrev_b32 v21, 16, v20")
        s("v_and_b32 v20, 0xffff0000, v20")
        s.poll([s.ld2(22, 10, 60, 0)], [23], 28)
        s("ds_write_b32 v13, v22 offset:%d" % L_X1)
        s("s_waitcnt lgkmcnt(0)")
        s("s_barrier")
        s.ts(8)
        s("ds_read_b128 v[64:67], v14 offset:%d" % L_X1)
        s("ds_read_b128 v[68:71], v14 offset:%d" % (L_X1+16))
        s("ds_read_u16 v24, v15 offset:%d" % L_X1)
        s("s_waitcnt lgkmcnt(0)")
        s("v_lshlrev_b32 v24, 16, v24")
        s.ln_stats(64, 72, 25, 26)
        s.ln_apply(24, 25, 26)
        s("v_mul_f32 v24, v24, v21"); s.bf16r(24)
        s("v_add_f32 v24, v24, v20")
        s.to_operand(24, 16)
        s.mfma_block(32, 16, 128, True)
        s.epilogue(32, 28)
        s.reduce8_publish(28, 61, tsk=9)
        s.end()
        s("L_e_gb:")
        s.voff_w(12, 12288)
        s("s_lshl_b32 s57, s48, 2"); s("s_add_u32 s57, s57, s49"); s("s_sub_u32 s57, s57, 28")
        s("s_mul_i32 s58, s3, %d" % (128*12288))
        s("s_lshl_b32 s50, s57, 7"); s("s_add_u32 s58, s58, s50"); s("s_add_u32 s58, s58, 10240")
        s("s_lshl_b32 s60, s3, 8")
        s.srd(32, 22, 12582912); s.srd(44, 20, 2048)
        s("buffer_load_dwordx4 v[20:23], v4, s[44:47], s60 offen")
        s("buffer_load_dwordx4 v[24:27], v4, s[44:47], s60 offen offset:128")
        s.load_block(64, 32, 12, 58, 12288)
        s.load_block(96, 32, 12, 58, 12288, extra=64*12288)
        s("s_lshl_b32 s61, s57, 9"); s("s_add_u32 s61, s61, 0x%x" % R_GB)
        s("s_waitcnt vmcnt(16)")
        s.silu8(20, 160); s.silu8(24, 160)
        s("s_waitcnt vmcnt(8)")
        s.perm_block(64, 128)
        s("s_nop 1")
        s.mfma_block(32, 20, 128, True)
        s("s_waitcnt vmcnt(0)")
        s.perm_block(96, 160)
        s("s_nop 1")
        s.mfma_block(32, 24, 160, False)
        s.epilogue(32, 28)
        s.reduce8_publish(28, 61, tsk=9)
        s.end()

    def q_poll(s):
        s("v_lshrrev_b32 v28, 5, v1"); s("v_lshlrev_b32 v28, 10, v28")
        s("v_and_b32 v29, 31, v1"); s("v_lshl_add_u32 v28, v29, 4, v28")
        s("s_lshl_b32 s51, s48, 3"); s("s_add_u32 s51, s51, s3"); s("s_lshl_b32 s51, s51, 11"); s("s_add_u32 s51, s51, 0x%x" % R_Q)
        s("s_lshl_b32 s50, s3, 8"); s("v_add_u32 v29, s50, v9")
        s.poll([s.ld4(32, 28, 51, 0), s.ld4(36, 28, 51, 512)], [33, 35, 37, 39], 40)
        s("v_add_f32 v32, v32, v36"); s("v_add_f32 v34, v34, v38")
        s("v_cvt_pk_bf16_f32 v32, v32, v34")
        s("ds_write_b32 v29, v32 offset:%d" % L_Q)
        s("s_waitcnt lgkmcnt(0)")
        s("s_barrier")

    def l_class(s):
        s.voff_w(12, 8192)
        s("s_sub_u32 s57, s48, 4")
        s("s_lshl_b32 s61, s57, 5"); s("s_add_u32 s61, s61, s49")
        s("s_lshr_b32 s59, s61, 6"); s("s_lshl_b32 s59, s59, 3"); s("s_add_u32 s59, s59, s3")
        s("s_lshl_b32 s58, s59, 19")
        s("s_and_b32 s50, s61, 63"); s("s_lshl_b32 s50, s50, 7"); s("s_add_u32 s58, s58, s50")
        s("v_lshlrev_b32 v14, 5, v1")
        s("v_lshlrev_b32 v15, 1, v1")
        s("s_lshl_b32 s60, s59, 7")
        s("s_lshl_b32 s62, s57, 2"); s("s_and_b32 s50, s49, 3"); s("s_add_u32 s62, s62, s50")
        s("s_lshl_b32 s63, s62, 7")
        s("s_waitcnt lgkmcnt(0)")
        s.srd(32, 10, 8388608); s.srd(44, 4, 2048)
        s("buffer_load_dwordx4 v[96:99], v14, s[44:47], 0 offen")
        s("buffer_load_dwordx4 v[100:103], v14, s[44:47], 0 offen offset:16")
        s("buffer_load_ushort v24, v15, s[44:47], s60 offen")
        s("buffer_load_ushort v27, v15, s[44:47], s63 offen")
        s.load_block(64, 32, 12, 58, 8192)
        s("s_load_dword s30, s[28:29], 0")
        s.srd(40, 28, 0x10000000)
        s("s_waitcnt vmcnt(8)")
        s("v_lshlrev_b32 v24, 16, v24"); s("v_lshlrev_b32 v27, 16, v27")
        s.ln_stats(96, 104, 25, 26)
        s.ln_apply(24, 25, 26)
        s.get_tag()
        s("s_lshl_b32 s51, s59, 11"); s("s_add_u32 s51, s51, 0x%x" % R_M1)
        s("s_add_u32 s52, s51, %d" % (16*2048))
        s("s_and_b32 s50, s61, 63"); s("s_lshl_b32 s50, s50, 1"); s("s_lshr_b32 s53, s61, 6"); s("s_add_u32 s50, s50, s53")
        s("s_lshl_b32 s61, s50, 9"); s("s_add_u32 s61, s61, 0x%x" % R_Q)
        s("s_waitcnt vmcnt(0)")
        s.ts(1)
        s.poll([s.ld2(32+2*i, 10, 51, 512*i) for i in range(4)] + [s.ld2(40+2*i, 10, 52, 512*i) for i in range(4)],
               [33+2*i for i in range(8)], 28)
        s.ts(2)
        s("v_add_f32 v32, v32, v34"); s("v_add_f32 v36, v36, v38"); s("v_add_f32 v40, v40, v42"); s("v_add_f32 v44, v44, v46")
        s("v_add_f32 v32, v32, v36"); s("v_add_f32 v40, v40, v44")
        s.bf16r(32); s.bf16r(40)
        s("v_add_f32 v40, 1.0, v40"); s.bf16r(40)
        s("v_mul_f32 v24, v24, v40"); s.bf16r(24)
        s("v_add_f32 v24, v24, v32")
        s("v_cvt_pk_bf16_f32 v24, v24, v24")
        s("ds_write_b16 v6, v24")
        s.perm_block(64, 128)
        s("s_waitcnt lgkmcnt(0)")
        s("ds_read_b128 v[16:19], v7")
        s("s_waitcnt lgkmcnt(0)")
        s.mfma_block(32, 16, 128, True)
        s.epilogue(32, 28)
        s.reduce8_publish(28, 61, tsk=3)
        s("s_barrier")
        lx = s.a.label("noxt")
        s("s_cmp_lg_u32 s3, 1"); s("s_cbranch_scc1 %s" % lx)
        s.xt_publish(28)
        s("%s:" % lx)
        s.voff_w(12, 2048)
        s("s_lshr_b32 s57, s49, 2")
        s("s_lshl_b32 s59, s57, 3"); s("s_add_u32 s59, s59, s3")
        s("s_lshl_b32 s58, s59, 17"); s("s_add_u32 s58, s58, s63")
        s.srd(32, 12, 8388608)
        s.load_block(64, 32, 12, 58, 2048)
        s("s_lshl_b32 s60, s59, 8"); s("s_add_u32 s60, s60, 0x%x" % R_O)
        s("v_lshlrev_b32 v13, 1, v4")
        s("s_lshl_b32 s61, s62, 3"); s("s_add_u32 s61, s61, s57"); s("s_lshl_b32 s61, s61, 9"); s("s_add_u32 s61, s61, 0x%x" % R_OP)
        s("s_waitcnt vmcnt(0)")
        s.ts(4)
        s.perm_block(64, 128)
        lnl = s.a.label("notw0")
        s("s_cmp_lg_u32 s3, 0"); s("s_cbranch_scc1 %s" % lnl)
        if s.local: s.xt_check(28)
        s("s_cmp_lg_u32 s57, 7"); s("s_cbranch_scc1 %s" % lnl)
        s("s_lshl_b32 s53, s62, 12")
        s("s_add_u32 s54, s53, 0x%x" % R_OP)
        s("s_add_u32 s55, s53, 0x%x" % R_FP)
        s("v_lshlrev_b32 v11, 4, v1")
        for i in range(4): s(s.ld4(96+4*i, 11, 54, 1024*i))
        for i in range(4): s(s.ld4(112+4*i, 11, 55, 1024*i))
        s("s_add_u32 s51, s53, 0x%x" % R_M2)
        s("s_add_u32 s52, s51, 0x10000")
        s("s_add_u32 s56, s51, 0x20000")
        lds_ = []
        for p, so in enumerate((51, 52, 56)):
            lds_ += [s.ld2(160+16*p+2*i, 10, so, 512*i) for i in range(8)]
        s.poll(lds_, [161+2*i for i in range(24)], 28)
        for p in range(3):
            b = 160+16*p
            s("v_add_f32 v%d, v%d, v%d" % (b, b, b+2)); s("v_add_f32 v%d, v%d, v%d" % (b+4, b+4, b+6))
            s("v_add_f32 v%d, v%d, v%d" % (b+8, b+8, b+10)); s("v_add_f32 v%d, v%d, v%d" % (b+12, b+12, b+14))
            s("v_add_f32 v%d, v%d, v%d" % (b, b, b+4)); s("v_add_f32 v%d, v%d, v%d" % (b+8, b+8, b+12))
            s("v_add_f32 v%d, v%d, v%d" % (b, b, b+8))
            s.bf16r(b)
        s("v_add_f32 v192, 1.0, v192")
        s("v_cvt_pk_bf16_f32 v208, v192, v176")
        s("v_mov_b32 v209, s31")
        s("s_lshl_b32 s51, s62, 9"); s("s_add_u32 s51, s51, 0x%x" % R_CS)
        s("buffer_store_dwordx2 v[208:209], v10, s[40:43], s51 offen sc1")
        s("%s:" % lnl)
        s.poll([s.ld4(32, 13, 60, 0), s.ld4(36, 13, 60, 16)], [33, 35, 37, 39], 28)
        s.ts(5)
        s("v_mov_b32 v16, v32"); s("v_mov_b32 v17, v34"); s("v_mov_b32 v18, v36"); s("v_mov_b32 v19, v38")
        s("s_nop 1")
        s.mfma_block(32, 16, 128, True)
        s.epilogue(32, 28)
        s.reduce8_publish(28, 61, lg=True, tsk=6)
        s("s_cmp_eq_u32 s57, 7")
        s("s_cbranch_scc1 L_leader")
        s("s_barrier")
        s.srd(32, 18, 7340032)
        s.load_block(64, 32, 12, 58, 2048)
        s("s_lshl_b32 s60, s59, 10"); s("s_add_u32 s60, s60, 0x%x" % R_U)
        s("s_add_u32 s61, s61, 0x%x" % (R_FP - R_OP))
        s("s_waitcnt vmcnt(0)")
        s.ts(7)
        s.perm_block(64, 128)
        s.poll([s.ld2(32, 10, 60, 0), s.ld2(34, 10, 60, 512)], [33, 35], 28)
        s.ts(8)
        s("v_add_f32 v24, v32, v34"); s.bf16r(24)
        s.silu1(24, 25)
        s.to_operand(24, 16)
        s.mfma_block(32, 16, 128, True)
        s.epilogue(32, 28)
        s.reduce8_publish(28, 61, lg=True, tsk=9)
        s.end()
        s("L_leader:")
        s("s_cmp_lg_u32 s3, 0"); s("s_cbranch_scc1 L_exit")
        s("s_mov_b32 s58, 0x55555555"); s("s_mov_b32 s59, 0x55555555")
        s("s_lshl_b32 s51, s62, 8"); s("s_add_u32 s51, s51, 0x%x" % R_X1)
        s.poll([s.ld2(32+2*i, 10, 54, 512*i) for i in range(8)], [33+2*i for i in range(8)], 28)
        s("v_add_f32 v32, v32, v34"); s("v_add_f32 v36, v36, v38"); s("v_add_f32 v40, v40, v42"); s("v_add_f32 v44, v44, v46")
        s("v_add_f32 v32, v32, v36"); s("v_add_f32 v40, v40, v44")
        s("v_add_f32 v32, v32, v40"); s.bf16r(32)
        s("v_mul_f32 v32, v32, v160"); s.bf16r(32)
        s("v_add_f32 v27, v27, v32"); s.bf16r(27)
        s("v_mov_b32 v35, s31")
        s("s_nop 0")
        s("v_mov_b32_dpp v33, v27 quad_perm:[1,0,3,2] row_mask:0xf bank_mask:0xf")
        s("v_cvt_pk_bf16_f32 v34, v27, v33")
        s("s_mov_b64 exec, s[58:59]")
        s("buffer_store_dwordx2 v[34:35], v9, s[40:43], s51 offen sc1")
        s("s_mov_b64 exec, -1")
        s.ts(7)
        s("s_lshl_b32 s51, s62, 9"); s("s_add_u32 s51, s51, 0x%x" % R_GB)
        s.srd(44, 24, 2048)
        s.poll([s.ld2(48, 10, 51, 0)], [49], 28)
        s.bf16r(48)
        s.poll([s.ld2(32+2*i, 10, 55, 512*i) for i in range(7)], [33+2*i for i in range(7)], 28)
        s("v_add_f32 v32, v32, v34"); s("v_add_f32 v36, v36, v38"); s("v_add_f32 v40, v40, v42")
        s("v_add_f32 v32, v32, v36"); s("v_add_f32 v40, v40, v44")
        s("v_add_f32 v32, v32, v40"); s.bf16r(32)
        s("v_mul_f32 v32, v32, v48"); s.bf16r(32)
        s("v_add_f32 v27, v27, v32")
        s("s_nop 1")
        s("v_mov_b32_dpp v33, v27 quad_perm:[1,0,3,2] row_mask:0xf bank_mask:0xf")
        s("v_cvt_pk_bf16_f32 v34, v27, v33")
        s("s_mov_b64 exec, s[58:59]")
        s("buffer_store_dword v34, v15, s[44:47], s63 offen")
        s.ts(10)
        s("s_cmp_lg_u32 s62, 0"); s("s_cbranch_scc1 L_exit")
        s("s_mov_b64 exec, 1")
        s("v_mov_b32 v36, 0")
        s("v_mov_b32 v37, s31")
        s("buffer_store_dword v37, v36, s[40:43], 0 offen sc1")
        s.end()

def gen(**kw):
    g = Gen(**kw); g.build()
    return kernel_file(["; @launch grid=(256,1,1) block=(512,1,1) lds=%d" % LDS_BYTES], [(KNAME, g.a.text(), 256, 102, 256)])

if __name__ == "__main__":
    ap = argparse.ArgumentParser()
    ap.add_argument("out"); ap.add_argument("--ts", action="store_true"); ap.add_argument("--nolocal", action="store_true")
    ap.add_argument("--sleep", type=int, default=0)
    a = ap.parse_args()
    open(a.out, "w").write(gen(ts=a.ts, local=not a.nolocal, sleep=a.sleep))
```
